```python
import torch

def _softmax(x, axis=-1):
    return torch.softmax(x, dim=axis)

def _gelu(x):
    return torch.nn.functional.gelu(x, approximate='tanh')

def _silu(x):
    return torch.nn.functional.silu(x)

def _sigmoid(x):
    return torch.sigmoid(x)

def _layernorm(x, axis=-1, eps=1e-05):
    m = x.mean(dim=axis, keepdim=True)
    v = x.var(dim=axis, keepdim=True, unbiased=False)
    return (x - m) / torch.sqrt(v + eps)

def _scatter_add(tgt, idx, src, axis=0):
    return tgt.clone().index_add_(axis, idx, src)

def _segment_sum(src, seg, n):
    out = torch.zeros((n,) + src.shape[1:], dtype=src.dtype)
    return out.index_add_(0, seg, src)

def _pad(x, pw):
    flat = tuple((v for pair in reversed(pw) for v in pair))
    return torch.nn.functional.pad(x, flat)
kernel_name = 'adaLN_cond__mha_block_cached__mixer_channel_mlp__prompt'

def setup_inputs():

    _w = lambda a: (lambda t: t.to(torch.bfloat16) if t.is_floating_point() else t)(torch.as_tensor(a))

    def _A_setup():
        B, Sq, D = (1, 2048, 1024)
        H, Sk, Dh = (32, 2048, 128)
        return {'x': _w((lambda *s: torch.randn(*s, dtype=torch.bfloat16) * 0.05)(B, Sq, D)), 'k_cache': _w((lambda *s: torch.randn(*s, dtype=torch.bfloat16) * 3.2)(B, H, Sk, Dh)), 'v_cache': _w((lambda *s: torch.randn(*s, dtype=torch.bfloat16) * 0.4)(B, H, Sk, Dh)), 'wq': _w((lambda *s: torch.randn(*s, dtype=torch.bfloat16) * 3.2)(D, H * Dh) * D ** (-0.5)), 'wo': _w((lambda *s: torch.randn(*s, dtype=torch.bfloat16) * 0.4)(H * Dh, D) * (H * Dh) ** (-0.5))}
    _A_in = _A_setup()

    def _B_setup():
        B, S, D, F = (1, 2048, 1024, 3584)
        return {'x': _w((lambda *s: torch.randn(*s, dtype=torch.bfloat16) * 0.05)(B, S, D)), 'w1': _w((lambda *s: torch.randn(*s, dtype=torch.bfloat16) * 3.2)(D, F) * D ** (-0.5)), 'b1': _w((lambda *s: torch.randn(*s, dtype=torch.bfloat16) * 1.6)(F)), 'w2': _w((lambda *s: torch.randn(*s, dtype=torch.bfloat16) * 0.1)(F, D) * F ** (-0.5)), 'b2': _w((lambda *s: torch.randn(*s, dtype=torch.bfloat16) * 0.2)(D))}
    _B_in = _B_setup()
    return {'A_x': _A_in['x'], 'A_k_cache': _A_in['k_cache'], 'A_v_cache': _A_in['v_cache'], 'A_wq': _A_in['wq'], 'A_wo': _A_in['wo'], 'B_x': _B_in['x'], 'B_w1': _B_in['w1'], 'B_b1': _B_in['b1'], 'B_w2': _B_in['w2'], 'B_b2': _B_in['b2'], 'c': _w((lambda *s: torch.randn(*s, dtype=torch.bfloat16) * 0.1)(1, 1024) * 8.0), 'w_mod': _w((lambda *s: torch.randn(*s, dtype=torch.bfloat16) * 0.1)(1024, 6 * 1024) * 1024 ** (-0.5) * 8.0)}

def reference(A_x, A_k_cache, A_v_cache, A_wq, A_wo, B_x, B_w1, B_b1, B_w2, B_b2, c, w_mod):

    def _A_ref(x, k_cache, v_cache, wq, wo):
        B, Sq, D = x.shape
        H, Dh = (32, 128)
        q = (lambda x, *d: x.permute(*d))((x @ wq).reshape(B, Sq, H, Dh), 0, 2, 1, 3)
        scores = torch.einsum('bhqd,bhkd->bhqk', q, k_cache) * Dh ** (-0.5)
        p = _softmax(scores, axis=-1)
        o = torch.einsum('bhqk,bhkd->bhqd', p, v_cache)
        return (lambda x, *d: x.permute(*d))(o, 0, 2, 1, 3).reshape(B, Sq, H * Dh) @ wo

    def _B_ref(x, w1, b1, w2, b2):
        y = _layernorm(x, axis=-1)
        h = _gelu(torch.einsum('bsd,df->bsf', y, w1) + b1)
        return torch.einsum('bsf,fd->bsd', h, w2) + b2
    x = A_x
    mod = (_silu(c) @ w_mod).reshape(c.shape[0], 6, 1, -1)
    sa, ca, ga, sb, cb, gb = (mod[:, 0].clone(), mod[:, 1].clone(), mod[:, 2].clone(), mod[:, 3].clone(), mod[:, 4].clone(), mod[:, 5].clone())
    h = _layernorm(x, axis=-1) * (1 + ca) + sa
    x = x + ga * _A_ref(h, A_k_cache, A_v_cache, A_wq, A_wo)
    h = _layernorm(x, axis=-1) * (1 + cb) + sb
    x = x + gb * _B_ref(h, B_w1, B_b1, B_w2, B_b2)
    return x
```

```python
import re

REG_RE = re.compile(r'^(-?)(abs\()?\|?([vas])(\d+|\[(\d+):(\d+)\])\|?\)?$')

TRANS = ('v_exp_f32', 'v_log_f32', 'v_rcp_f32', 'v_rsq_f32', 'v_sqrt_f32', 'v_sin_f32', 'v_cos_f32',
         'v_rcp_iflag_f32')


def parse_reg(tok):
    tok = tok.strip()
    if tok in ('vcc',):
        return [('s', 106), ('s', 107)]
    if tok == 'vcc_lo':
        return [('s', 106)]
    if tok == 'vcc_hi':
        return [('s', 107)]
    if tok == 'exec':
        return [('s', 126), ('s', 127)]
    if tok == 'm0':
        return [('s', 124)]
    m = REG_RE.match(tok)
    if not m:
        return []
    kind = m.group(3)
    if m.group(5) is not None:
        lo, hi = int(m.group(5)), int(m.group(6))
    else:
        lo = hi = int(m.group(4))
    return [(kind, i) for i in range(lo, hi + 1)]


def split_ops(s):
    out, depth, cur = [], 0, ''
    for ch in s:
        if ch in '[(':
            depth += 1
        if ch in '])':
            depth -= 1
        if ch == ',' and depth == 0:
            out.append(cur.strip())
            cur = ''
        else:
            cur += ch
    if cur.strip():
        out.append(cur.strip())
    return out


class Ins:
    __slots__ = ('text', 'mn', 'kind', 'reads', 'writes', 'passes', 'tag', 'cread', 'ab', 'nop',
                 'wait_vm', 'wait_lgkm', 'wait_tag', 'is_lds_dma', 'wide_store', 'dpp', 'sread', 'comment', 'touch')

    def __init__(self, text, tag=None):
        self.text = text
        self.tag = tag
        self.reads = []
        self.writes = []
        self.passes = 0
        self.cread = []
        self.ab = []
        self.nop = 0
        self.wait_vm = None
        self.wait_lgkm = None
        self.wait_tag = None
        self.is_lds_dma = False
        self.wide_store = False
        self.dpp = False
        self.touch = []
        self.kind = None
        t = text.split(';')[0].strip()
        if t.endswith(':'):
            self.kind = 'label'
            self.mn = t
            return
        if t.startswith('.'):
            self.kind = 'label'
            self.mn = t
            return
        parts = t.split(None, 1)
        mn = parts[0]
        self.mn = mn
        rest = parts[1] if len(parts) > 1 else ''
        ops = split_ops(rest)
        mods = ''
        if ops:
            last = ops[-1].split(None, 1)
            ops[-1] = last[0]
            mods = last[1] if len(last) > 1 else ''
        R = lambda i: parse_reg(ops[i]) if i < len(ops) else []
        base = mn.replace('_e32', '').replace('_e64', '')
        if mn.startswith('v_mfma'):
            self.kind = 'mfma'
            self.passes = 8 if '32x32x16' in mn else 4 if '16x16x32' in mn else 2 if '4x4x4' in mn else None
            assert self.passes is not None, mn
            self.writes = R(0)
            self.ab = R(1) + R(2)
            self.cread = R(3)
            self.reads = self.ab + self.cread
        elif mn.startswith('v_'):
            self.kind = 'trans' if base in TRANS else 'valu'
            if 'dpp' in mn or 'row_' in mods or 'quad_perm' in mods or 'row_' in rest or 'quad_perm' in rest:
                self.dpp = True
            if base.startswith('v_permlane') and 'swap' in base:
                self.writes = R(0) + R(1)
                self.reads = R(0) + R(1)
                self.kind = 'permlane'
            elif base in ('v_add_co_u32', 'v_sub_co_u32', 'v_subrev_co_u32'):
                self.writes = R(0) + R(1)
                self.reads = R(2) + R(3)
            elif base in ('v_addc_co_u32', 'v_subb_co_u32'):
                self.writes = R(0) + R(1)
                self.reads = R(2) + R(3) + R(4)
            elif base == 'v_nop':
                pass
            else:
                self.writes = R(0)
                for i in range(1, len(ops)):
                    self.reads += R(i)
                if base in ('v_fmac_f32', 'v_dot2c_f32_bf16', 'v_pk_fmac_f16', 'v_writelane_b32') or self.dpp:
                    self.reads += R(0)
                if base.startswith('v_cmpx'):
                    self.writes += parse_reg('exec')
        elif mn.startswith('ds_'):
            self.kind = 'ds'
            if 'read' in mn or 'bpermute' in mn or 'swizzle' in mn or 'permute' in mn:
                self.writes = R(0)
                for i in range(1, len(ops)):
                    self.reads += R(i)
            else:
                for i in range(len(ops)):
                    self.reads += R(i)
        elif mn.startswith('buffer_') or mn.startswith('global_'):
            self.kind = 'vmem'
            if mn in ('buffer_wbl2', 'buffer_inv'):
                pass
            elif re.search(r'\blds\b', mods) or 'load_lds' in mn:
                self.is_lds_dma = True
                for i in range(len(ops)):
                    self.reads += R(i)
                self.reads += parse_reg('m0')
            elif 'load' in mn:
                self.writes = R(0)
                for i in range(1, len(ops)):
                    self.reads += R(i)
            elif 'atomic' in mn:
                for i in range(len(ops)):
                    self.reads += R(i)
                if 'sc0' in mods:
                    self.writes = R(0)
            else:
                for i in range(len(ops)):
                    self.reads += R(i)
                if 'x4' in mn or 'x3' in mn:
                    self.wide_store = True
                    self.cread = R(0) if mn.startswith('buffer_') else R(1)
        elif mn.startswith('s_load') or mn.startswith('s_buffer_load') or mn in ('s_memtime', 's_memrealtime'):
            self.kind = 'smem'
            self.writes = R(0)
            for i in range(1, len(ops)):
                self.reads += R(i)
        elif mn == 's_waitcnt':
            self.kind = 'wait'
            m = re.search(r'vmcnt\((\d+)\)', t)
            if m:
                self.wait_vm = int(m.group(1))
            m = re.search(r'lgkmcnt\((\d+)\)', t)
            if m:
                self.wait_lgkm = int(m.group(1))
        elif mn == 's_nop':
            self.kind = 'nop'
            self.nop = int(ops[0], 0)
        elif mn in ('s_barrier', 's_endpgm', 's_setprio', 's_sleep', 's_branch', 's_setpc_b64', 's_call_b64') or mn.startswith('s_cbranch'):
            self.kind = 'ctl'
            if 'vcc' in mn:
                self.reads = parse_reg('vcc')
        elif mn.startswith('s_'):
            self.kind = 'salu'
            if mn.startswith('s_cmp') or mn.startswith('s_bitcmp'):
                for i in range(len(ops)):
                    self.reads += R(i)
            else:
                self.writes = R(0)
                for i in range(1, len(ops)):
                    self.reads += R(i)
                if 'saveexec' in mn:
                    self.writes += parse_reg('exec')
                if mn in ('s_addk_i32', 's_mulk_i32'):
                    self.reads += R(0)
        else:
            raise ValueError('unknown instr: ' + text)


class Seg:
    def __init__(self, name):
        self.name = name
        self.ins = []

    def __call__(self, text, tag=None, touch=None):
        if isinstance(text, tuple):
            text, touch = text
        for line in text.strip().split('\n'):
            line = line.strip()
            if not line:
                continue
            i = Ins(line, tag)
            if touch:
                i.touch = [r for t in touch for r in parse_reg(t)]
            self.ins.append(i)
        return self

    def label(self, l):
        self.ins.append(Ins(l + ':'))

    def wait_tag(self, tag, extra=''):
        i = Ins('s_waitcnt vmcnt(63)')
        i.wait_tag = tag
        i.wait_vm = 63
        self.ins.append(i)


VALU_KINDS = ('valu', 'trans', 'permlane')
MF_D_AB = {2: 5, 4: 8, 8: 12}
MF_D_VALU = {2: 5, 4: 8, 8: 12}
MF_D_COVL = {2: 4, 4: 6, 8: 10}
MF_C_WAR = {2: 1, 4: 3, 8: 7}


def required_states(prod, cons):
    need = 0
    pw = set(prod.writes)
    cr = set(cons.reads)
    cw = set(cons.writes)
    if prod.kind in VALU_KINDS:
        pv = {r for r in pw if r[0] in 'va'}
        ps = {r for r in pw if r[0] == 's'}
        if cons.kind == 'mfma' and pv & cr:
            need = max(need, 2)
        if cons.kind == 'mfma' and (('s', 126) in ps):
            need = max(need, 4)
        if prod.kind == 'trans' and cons.kind in ('valu', 'permlane') and pv & cr:
            need = max(need, 1)
        if cons.kind == 'permlane' and pv & cr:
            need = max(need, 2)
        if cons.dpp and pv & cr:
            need = max(need, 2)
        if cons.dpp and ('s', 126) in ps:
            need = max(need, 5)
        if cons.mn.startswith('v_readfirstlane') or cons.mn.startswith('v_readlane'):
            if pv & cr:
                need = max(need, 1)
            if ps & cr:
                need = max(need, 4)
            if ('s', 126) in ps:
                need = max(need, 4)
        if cons.mn.startswith('v_writelane') and ps & cr:
            need = max(need, 4)
        if cons.kind in VALU_KINDS and ps & cr:
            need = max(need, 2)
        if cons.kind == 'vmem' and ps & cr:
            need = max(need, 5)
        if cons.kind in ('salu', 'ctl', 'smem') and ps & cr:
            need = max(need, 1)
        if ('sdwa' in prod.text or 'op_sel' in prod.text) and cons.kind in VALU_KINDS and pv & (cr | cw):
            need = max(need, 1)
    if prod.kind == 'salu' and ('s', 124) in pw and (cons.is_lds_dma or 'addtid' in cons.mn):
        need = max(need, 1)
    if prod.kind == 'mfma':
        p = prod.passes
        if cons.kind == 'mfma':
            if pw & set(cons.ab):
                need = max(need, MF_D_AB[p])
            cc = set(cons.cread)
            if pw & cc:
                if cons.cread == prod.writes and cons.passes == prod.passes:
                    need = max(need, 2 if p == 2 else 0)
                else:
                    need = max(need, MF_D_COVL[p])
            elif pw & cw:
                need = max(need, MF_D_COVL[p])
        elif cons.kind in VALU_KINDS:
            if pw & (cr | cw):
                need = max(need, MF_D_VALU[p])
            if set(prod.cread) & cw:
                need = max(need, MF_C_WAR[p])
        elif cons.kind in ('ds', 'vmem'):
            if pw & (cr | cw):
                need = max(need, MF_D_VALU[p])
            if set(prod.cread) & cw:
                need = max(need, MF_C_WAR[p])
    if prod.wide_store:
        if set(prod.cread) & cw:
            need = max(need, 2 if cons.kind in VALU_KINDS else 1)
    return need


MAXH = 20


class Kernel:
    def __init__(self, name, vgprs=256, agprs=0, sgprs=102, grid=(256, 1, 1), block=(256, 1, 1), lds=0):
        self.name = name
        self.segs = {}
        self.order = []
        self.traces = []
        self.vgprs, self.agprs, self.sgprs = vgprs, agprs, sgprs
        self.grid, self.block, self.lds = grid, block, lds

    def seg(self, name):
        s = Seg(name)
        self.segs[name] = s
        self.order.append(name)
        return s

    def trace(self, *names):
        self.traces.append(list(names))

    def _simulate(self, trace, pre_wait, pre_nop, tagres):
        changed = False
        lg = []
        vm = []
        hist = []

        def advance(n):
            for h in hist:
                h[1] += n
            while hist and hist[0][1] > MAXH:
                hist.pop(0)

        for sname in trace:
            seg = self.segs[sname]
            for idx, ins in enumerate(seg.ins):
                key = (sname, idx)
                if ins.kind == 'label':
                    continue
                touched = set(ins.reads) | set(ins.writes) | set(ins.touch)
                need_l = None
                need_v = None
                for pos, (k, dst) in enumerate(lg):
                    if dst & touched:
                        n = len(lg) - 1 - pos
                        if any(kk == 'smem' for kk, _ in lg):
                            n = 0
                        need_l = n if need_l is None else min(need_l, n)
                for pos, (tg, dst) in enumerate(vm):
                    if dst & touched:
                        n = len(vm) - 1 - pos
                        need_v = n if need_v is None else min(need_v, n)
                pw = pre_wait.get(key, [None, None])
                if need_v is not None and (pw[0] is None or need_v < pw[0]):
                    pw = [need_v, pw[1]]
                    pre_wait[key] = pw
                    changed = True
                if need_l is not None and (pw[1] is None or need_l < pw[1]):
                    pw = [pw[0], need_l]
                    pre_wait[key] = pw
                    changed = True
                if pw[0] is not None or pw[1] is not None:
                    if pw[0] is not None and len(vm) > pw[0]:
                        vm = vm[len(vm) - pw[0]:] if pw[0] > 0 else []
                    if pw[1] is not None and len(lg) > pw[1]:
                        lg = lg[len(lg) - pw[1]:] if pw[1] > 0 else []
                    advance(1)
                need = 0
                for h, dist in hist:
                    r = required_states(h, ins)
                    if r > dist:
                        need = max(need, r - dist)
                have = pre_nop.get(key, 0)
                if need > have:
                    pre_nop[key] = need
                    have = need
                    changed = True
                if have:
                    advance(have)
                if ins.kind == 'wait':
                    wv = ins.wait_vm
                    if ins.wait_tag is not None:
                        n = None
                        for pos, (tg, dst) in enumerate(vm):
                            tags = ins.wait_tag if isinstance(ins.wait_tag, (list, tuple)) else [ins.wait_tag]
                            if tg in tags:
                                n = len(vm) - 1 - pos
                        cur = tagres.get(key, 63)
                        if n is not None and n < cur:
                            tagres[key] = n
                            cur = n
                            changed = True
                        wv = cur
                    if wv is not None and len(vm) > wv:
                        vm = vm[len(vm) - wv:] if wv > 0 else []
                    if ins.wait_lgkm is not None and len(lg) > ins.wait_lgkm:
                        lg = lg[len(lg) - ins.wait_lgkm:] if ins.wait_lgkm > 0 else []
                elif ins.kind == 'ds':
                    lg.append(('ds', set(ins.writes)))
                    if len(lg) > 15:
                        self.lgkm_over = max(getattr(self, 'lgkm_over', 0), len(lg))
                elif ins.kind == 'smem':
                    lg.append(('smem', set(ins.writes)))
                elif ins.kind == 'vmem':
                    vm.append((ins.tag, set(ins.writes)))
                    if len(vm) > 63:
                        raise RuntimeError('vmcnt overflow at %s %s' % (key, ins.text))
                advance(ins.nop + 1 if ins.kind == 'nop' else 1)
                hist.append([ins, 0])
        return changed

    def finalize(self, verbose=True):
        pre_wait, pre_nop, tagres = {}, {}, {}
        if not self.traces:
            self.traces = [list(self.order)]
        for it in range(50):
            ch = False
            for tr in self.traces:
                ch |= self._simulate(tr, pre_wait, pre_nop, tagres)
            if not ch:
                break
        else:
            raise RuntimeError('no fixpoint')
        out = []
        out.append('.p2align 8')
        out.append('.globl %s' % self.name)
        out.append('.type %s,@function' % self.name)
        out.append('%s:' % self.name)
        stats = {}
        for sname in self.order:
            seg = self.segs[sname]
            nw = nn = 0
            for idx, ins in enumerate(seg.ins):
                key = (sname, idx)
                if key in pre_wait:
                    v, l = pre_wait[key]
                    s = 's_waitcnt'
                    if v is not None:
                        s += ' vmcnt(%d)' % min(v, 63)
                    if l is not None:
                        s += ' lgkmcnt(%d)' % min(l, 15)
                    out.append('  ' + s)
                    nw += 1
                n = pre_nop.get(key, 0)
                while n > 0:
                    k = min(n, 16)
                    out.append('  s_nop %d' % (k - 1))
                    n -= k
                    nn += 1
                if ins.wait_tag is not None:
                    out.append('  s_waitcnt vmcnt(%d)' % tagres.get(key, 63))
                elif ins.kind == 'label':
                    out.append(ins.text)
                else:
                    out.append('  ' + ins.text)
            stats[sname] = (len(seg.ins), nw, nn)
        if verbose:
            print('kernel', self.name, {k: v for k, v in stats.items()}, 'lgkm_over', getattr(self, 'lgkm_over', 0))
        return '\n'.join(out)

    def descriptor(self):
        v = self.vgprs
        acc_off = (v + 3) // 4 * 4
        nfv = acc_off + self.agprs if self.agprs else v
        return '\n'.join([
            '.p2align 6',
            '.amdhsa_kernel %s' % self.name,
            '  .amdhsa_next_free_vgpr %d' % nfv,
            '  .amdhsa_next_free_sgpr %d' % self.sgprs,
            '  .amdhsa_accum_offset %d' % acc_off,
            '  .amdhsa_group_segment_fixed_size 0',
            '  .amdhsa_kernarg_size 120',
            '  .amdhsa_user_sgpr_count 2',
            '  .amdhsa_user_sgpr_kernarg_segment_ptr 1',
            '  .amdhsa_system_sgpr_workgroup_id_x 1',
            '  .amdhsa_float_denorm_mode_32 3',
            '  .amdhsa_float_denorm_mode_16_64 3',
            '.end_amdhsa_kernel',
        ])

    def launch_line(self):
        return '; @launch kernel=%s grid=(%d,%d,%d) block=(%d,%d,%d) lds=%d' % (
            (self.name,) + tuple(self.grid) + tuple(self.block) + (self.lds,))


def build_file(kernels, header='', launches=None):
    lines = []
    if header:
        lines.append(header.rstrip('\n'))
    for k in (launches or kernels):
        lines.append(k.launch_line())
    lines.append('.amdgcn_target "amdgcn-amd-amdhsa--gfx950"')
    lines.append('.text')
    for k in kernels:
        lines.append(k.finalize())
    lines.append('.section .rodata,"a"')
    for k in kernels:
        lines.append(k.descriptor())
    return '\n'.join(lines) + '\n'
```

```python
from asmlib import *
import layout as L
from k_small import srd
from k_gemm import interleave, lane_noff

QSCALE = 0x3e0293ee
TBIAS = 24.0
TB_HEX = 0x41c00000

S0 = 0
P = 128
MN = 160
ET = 176
ORA = 184
KA = 186
VA = 190
DK = 198
DV = 202
T = 204
LANE = 220
OA = 221
XA = 222
DX = 224
DW = 232
NV = 240
O = 0
Q = 128
FRG = 192
LS = 224
ONES = 240
NA = 256

KBASE = 32 * 1024
VBASE = 96 * 1024


def kslot(i): return ((i + 1) % 4) * 16384
def vslot(i): return ((i + 3) % 4) * 16384
def Sreg(buf, kt, qg): return S0 + buf * 64 + (kt * 4 + qg) * 4
def Preg(ks, qg): return P + (ks * 4 + qg) * 4


def mf(d, dk, a, ak, b, bk, c, ck):
    cs = '%s[%d:%d]' % (ck, c, c + 3) if ck else str(c)
    return 'v_mfma_f32_16x16x32_bf16 %s[%d:%d], %s[%d:%d], %s[%d:%d], %s' % (dk, d, d + 3, ak, a, a + 3, bk, b, b + 3, cs)


def dma_k(i):
    out = ['s_add_u32 m0, s44, %d' % (KBASE + kslot(i))]
    for j in range(4):
        out.append('buffer_load_dwordx4 v%d, s[8:11], s40 offen offset:%d lds' % (DK + j, j * 1024))
    out.append('s_add_u32 s40, s40, 16384')
    return out


def dma_v(i):
    out = ['s_add_u32 m0, s44, %d' % (VBASE + vslot(i))]
    for j in range(4):
        out.append('buffer_load_dwordx4 v%d, s[12:15], s41 offen offset:%d lds' % (DV + (j & 1), j * 1024))
    out.append('s_add_u32 s41, s41, 16384')
    return out


def kread(i, n, fb):
    kt, s = n >> 2, n & 3
    d = FRG + fb * 4
    return ['ds_read_b128 a[%d:%d], v%d offset:%d' % (d, d + 3, KA + s, kslot(i) + kt * 4096)]


def vread(i, n, fb):
    ks, dt = n >> 3, n & 7
    d = FRG + fb * 4
    return ['ds_read_b64_tr_b16 a[%d:%d], v%d offset:%d' % (d + 2 * rr, d + 2 * rr + 1, VA + dt, vslot(i) + (32 * ks + 16 * rr) * 256)
            for rr in range(2)]


def frag_regs(fb):
    return 'a[%d:%d]' % (FRG + fb * 4, FRG + fb * 4 + 3)


def softmax_half(buf, ks, with_or=True, et0=0):
    groups = []
    n = 0
    acc = ORA + ks
    pend = []
    for qg in range(4):
        for j in range(4):
            src = Sreg(buf, 2 * ks + (j >> 1), qg) + 2 * (j & 1)
            t = ET + 2 * ((n + et0) % 4)
            g = [(2, 'v_exp_f32 v%d, v%d' % (t, src)), (2, 'v_exp_f32 v%d, v%d' % (t + 1, src + 1)),
                 (1, 'v_cvt_pk_bf16_f32 v%d, v%d, v%d' % (Preg(ks, qg) + j, t, t + 1))]
            pend.append(Preg(ks, qg) + j)
            if with_or:
                if n == 2:
                    g.append((1, 'v_or3_b32 v%d, v%d, v%d, v%d' % (acc, pend[0], pend[1], pend[2])))
                    pend = []
                elif n > 2 and len(pend) == 2:
                    g.append((1, 'v_or3_b32 v%d, v%d, v%d, v%d' % (acc, pend[0], pend[1], acc)))
                    pend = []
                elif n == 15:
                    g.append((1, 'v_bitop3_b32 v%d, v%d, v%d, s45 bitop3:0xa8' % (acc, acc, pend[0])))
                    pend = []
            groups.append(g)
            n += 1
    return groups


def rowmax(seg, regs_by_qg, dst, t):
    for qg in range(4):
        r = regs_by_qg[qg]
        seg('v_max3_f32 v%d, v%d, v%d, v%d' % (dst + qg, r[0], r[1], r[2]))
        i = 3
        while i + 1 < len(r):
            seg('v_max3_f32 v%d, v%d, v%d, v%d' % (dst + qg, r[i], r[i + 1], dst + qg))
            i += 2
        if i < len(r):
            seg('v_max_f32 v%d, v%d, v%d' % (dst + qg, r[i], dst + qg))
    for sw in ('v_permlane16_swap_b32', 'v_permlane32_swap_b32'):
        for qg in range(4):
            seg('v_mov_b32 v%d, v%d' % (t + qg, dst + qg))
        for qg in range(4):
            seg('%s v%d, v%d' % (sw, t + qg, dst + qg))
        for qg in range(4):
            seg('v_max_f32 v%d, v%d, v%d' % (dst + qg, dst + qg, t + qg))


def sregs(buf, kts):
    return [[Sreg(buf, kt, qg) + r for kt in kts for r in range(4)] for qg in range(4)]


def slow_path(seg, cur, chk, replay):
    seg('s_nop 15')
    D, TT, AL = T, T + 4, T + 8
    kts = [0, 1, 2, 3] if chk == 0 else [2, 3]
    rowmax(seg, sregs(cur, kts), D, TT)
    for qg in range(4):
        seg('v_add_f32 v%d, 0x%x, v%d' % (D + qg, TB_HEX, D + qg))
        seg('v_max_f32 v%d, 0, v%d' % (D + qg, D + qg))
    for qg in range(4):
        seg('v_exp_f32 v%d, -v%d' % (AL + qg, D + qg))
    for qg in range(4):
        for r in range(4):
            seg('v_sub_f32 v%d, v%d, v%d' % (MN + qg * 4 + r, MN + qg * 4 + r, D + qg))
        for kt in kts:
            for r in range(4):
                x = Sreg(cur, kt, qg) + r
                seg('v_sub_f32 v%d, v%d, v%d' % (x, x, D + qg))
        for kt in range(4):
            for r in range(4):
                x = Sreg(1 - cur, kt, qg) + r
                seg('v_sub_f32 v%d, v%d, v%d' % (x, x, D + qg))
    regs = [(O + (dt * 4 + qg) * 4 + r, qg) for dt in range(8) for qg in range(4) for r in range(4)]
    regs += [(LS + qg * 4 + r, qg) for qg in range(4) for r in range(4)]
    for i in range(0, len(regs), 4):
        for j in range(4):
            seg('v_accvgpr_read_b32 v%d, a%d' % (TT + j, regs[i + j][0]))
        for j in range(4):
            seg('v_mul_f32 v%d, v%d, v%d' % (TT + j, TT + j, AL + regs[i + j][1]))
        for j in range(4):
            seg('v_accvgpr_write_b32 a%d, v%d' % (regs[i + j][0], TT + j))
    for t in replay:
        seg(t)
    seg('s_nop 3')
    seg('s_setpc_b64 s[60:61]')


class Item:
    def __init__(self, text, units, earliest, deadline, deps=(), stream=None):
        self.text, self.units, self.earliest, self.deadline = text, units, earliest, deadline
        self.deps = list(deps)
        self.slot = None
        self.stream = stream


def edf(n, items, fixed, cap=2):
    gaps = [[] for _ in range(n)]
    used = [len(fixed.get(i, [])) for i in range(n)]
    todo = list(items)
    for slot in range(n):
        while True:
            ready = [it for it in todo if it.earliest <= slot and all(
                d.slot is not None and d.slot + gap <= slot for d, gap in it.deps)]
            if not ready:
                break
            ready.sort(key=lambda it: it.deadline)
            room = cap - used[slot]
            late = [it for it in ready if it.deadline <= slot]
            pick = None
            singles = [it for it in ready if it.units == 1]
            dbl = [it for it in ready if it.units == 2]
            if room >= 2:
                if dbl and (len(singles) < 2 or dbl[0].deadline <= singles[0].deadline):
                    pick = dbl[0]
                elif singles:
                    pick = singles[0]
            elif room == 1 and singles:
                pick = singles[0]
            if pick is None and late and (slot == n - 1 or late[0].deadline + HARD <= slot):
                pick = late[0]
            if pick is None and slot == n - 1:
                pick = ready[0]
            if pick is None:
                break
            pick.slot = slot
            gaps[slot].append(pick)
            used[slot] += pick.units
            todo.remove(pick)
    assert not todo, [t.text for t in todo]
    return gaps, used


HARD = 2
LEAD = 5
NA_TAIL = 8


def sm_items(groups, t0, t1, prev, earliest, hard_end):
    items = []
    n = len(groups)
    for gi, g in enumerate(groups):
        dl = t0 + (t1 - t0) * gi / max(1, n)
        step = (t1 - t0) / max(1, n) / 2
        deps = []
        if prev.get('e'):
            deps.append((prev['e'], 0))
        cv = prev.setdefault('cv', [])
        if len(cv) >= 4:
            deps.append((cv[-4], 0))
        e0 = Item(g[0][1], 2, earliest, dl, deps)
        e1 = Item(g[1][1], 2, earliest, dl + step, [(e0, 0)])
        cdeps = [(e1, 1), (e0, 1)]
        if cv:
            cdeps.append((cv[-1], 0))
        c = Item(g[2][1], 1, earliest, min(dl + step + 3, hard_end - 1), cdeps)
        prev['e'] = e1
        cv.append(c)
        items += [e0, e1, c]
        if len(g) > 3:
            od = [(c, 0)]
            if prev.get('o'):
                od.append((prev['o'], 0))
            o = Item(g[3][1], 1, earliest, min(dl + step + 6, hard_end), od)
            prev['o'] = o
            items.append(o)
    return items


def body(k, seg, i, stubs, do_qk=True, dmak=True, dmav=True, vmw=12, nkq=True, extra=()):
    cur, nxt = i & 1, (i + 1) & 1
    mfm = []
    first_use = {}
    if do_qk:
        for n in range(16):
            kt, s = n >> 2, n & 3
            first_use[n] = len(mfm)
            for qg in range(4):
                d = Sreg(nxt, kt, qg)
                txt = mf(d, 'v', FRG + (n % 8) * 4, 'a', Q + (s * 4 + qg) * 4, 'a', MN + qg * 4 if s == 0 else d, 'v')
                if qg == 0 and n % 2 == 0:
                    txt = (txt, [frag_regs((n + 1) % 8)])
                mfm.append(txt)
    pvs = []
    for ks in range(2):
        pvs.append(len(mfm))
        for qg in range(4):
            mfm.append(mf(LS + qg * 4, 'a', ONES, 'a', Preg(ks, qg), 'v', LS + qg * 4, 'a'))
        for dt in range(8):
            n = 16 + ks * 8 + dt
            first_use[n] = len(mfm)
            for qg in range(4):
                d = O + (dt * 4 + qg) * 4
                txt = mf(d, 'a', FRG + (n % 8) * 4, 'a', Preg(ks, qg), 'v', d, 'a')
                if qg == 0 and n % 2 == 0:
                    txt = (txt, [frag_regs((n + 1) % 8)])
                mfm.append(txt)
    N = len(mfm)
    fixed = {}
    for n, fu in first_use.items():
        if n % 2 == 0:
            fixed.setdefault((fu - 1) % N, []).append(None)
    lbl = lambda ks: 'attn_back_%s_%d' % (seg.name + str(i), ks)
    stub = lambda ks: 'attn_stub_%s_%d' % (seg.name + str(i), ks)
    items = []
    upfront = []
    prevr = None
    for n in range(32 + LEAD):
        if n < 16:
            if not do_qk or n < LEAD:
                continue
            rd = kread(i + 1, n, n % 8)
        elif n < 32:
            rd = vread(i, n - 16, n % 8)
        else:
            if not nkq:
                continue
            rd = kread(i + 2, n - 32, n % 8)
        src = n - LEAD
        if src not in first_use:
            upfront += rd
            continue
        ear = first_use[n - 8] + 3 if (n - 8) in first_use else 0
        for t in rd:
            it = Item(t, 1, max(ear, first_use[src] - 4), min(first_use[src] + 2, N - 1), [(prevr, 0)] if prevr else [])
            prevr = it
            items.append(it)
    pre = []
    if vmw is not None:
        pre = ['s_waitcnt vmcnt(%d)' % vmw, 's_barrier']
    dm = (dma_k(i + 4) if dmak else []) + (dma_v(i + 3) if dmav else []) + list(extra)
    prevd = None
    for j, t in enumerate(dm):
        it = Item(t, 1, 0, 4 + j * 4, [(prevd, 1 if 'm0' in prevd.text.split(',')[0] else 0)] if prevd else [])
        prevd = it
        items.append(it)
    gA = softmax_half(cur, 0)
    gB = softmax_half(cur, 1)
    gN = softmax_half(nxt, 0)[:NA_TAIL] if do_qk else []
    st = {}
    for t in pre + upfront:
        seg(t)
    if do_qk:
        nrest = (16 - NA_TAIL) + 16
        tA = (pvs[1] - 9) * (16 - NA_TAIL) / nrest
        iA = sm_items(gA[NA_TAIL:], 0, tA, st, 0, pvs[0] - 3)
        iB = sm_items(gB, tA, pvs[1] - 9, st, 0, pvs[1] - 3)
        iN = sm_items(gN, pvs[1], N - 6, st, pvs[1], N - 1)
        cap = 2
        chks = [0, 1]
    else:
        for g in gA[NA_TAIL:]:
            for _, t in g:
                seg(t)
        seg('v_cmp_ne_u32 vcc, 0, v%d' % ORA)
        seg('s_cbranch_vccnz %s' % stub(0))
        seg.label(lbl(0))
        iA, iN = [], []
        iB = sm_items(gB, 0, pvs[1] - 9, st, 0, pvs[1] - 3)
        cap = 4
        chks = [1]
    items += iA + iB + iN
    for ks in chks:
        at = pvs[ks]
        fixed.setdefault(at - 2, []).append('v_cmp_ne_u32 vcc, 0, v%d' % (ORA + ks))
        fixed.setdefault(at - 1, []).append('s_cbranch_vccnz %s\n%s:' % (stub(ks), lbl(ks)))
    gaps, used = edf(N, items, fixed, cap)
    for it in iA:
        assert it.slot <= pvs[0] - 2, (it.text, it.slot)
    for it in iB:
        assert it.slot <= pvs[1] - 2, (it.text, it.slot)
    for j in range(N):
        seg(mfm[j])
        for it in gaps[j]:
            seg(it.text)
        for t in fixed.get(j, []):
            if t:
                seg(t)
    allA = [t for g in gA for _, t in g if not ('or3' in t or 'bitop' in t)]
    allB = [t for g in gB for _, t in g if not ('or3' in t or 'bitop' in t)]
    doneB = [it.text for j in range(pvs[0]) for it in gaps[j] if it in iB] if do_qk else []
    stubs.append((stub(0), lbl(0), cur, 0, tuple(allA + doneB)))
    stubs.append((stub(1), lbl(1), cur, 1, tuple(allB)))
    over = sum(max(0, u - 2) for u in used)
    return sum(used), over


def k_attn():
    name = 'attn_kernel'
    k = Kernel(name, vgprs=NV, agprs=NA, grid=(256, 1, 1), block=(256, 1, 1), lds=160 * 1024, sgprs=72)
    s = k.seg('pro')
    s('s_cmp_ge_u32 s2, 256')
    s('s_cbranch_scc1 attn_end')
    s('s_load_dwordx4 s[8:11], s[0:1], %d' % L.KA['k'])
    s('s_load_dwordx2 s[20:21], s[0:1], %d' % L.KA['wq'])
    s('s_load_dwordx2 s[4:5], s[0:1], %d' % L.KA['ws'])
    s('v_and_b32 v%d, 63, v0' % LANE)
    s('v_lshrrev_b32 v%d, 6, v0' % T)
    s('v_readfirstlane_b32 s30, v%d' % T)
    s('s_and_b32 s31, s2, 7')
    s('s_lshl_b32 s31, s31, 2')
    s('s_bfe_u32 s32, s2, 0x20003')
    s('s_add_u32 s31, s31, s32')
    s('s_lshr_b32 s32, s2, 5')
    s('v_lshrrev_b32 v%d, 3, v%d' % (T, LANE))
    s('v_and_b32 v%d, 7, v%d' % (T + 1, LANE))
    s('v_lshrrev_b32 v%d, 4, v%d' % (T + 2, LANE))
    s('s_lshl_b32 s33, s30, 6')
    s('v_add_u32 v%d, s33, v%d' % (T, T))
    s('v_lshlrev_b32 v%d, 11, v%d' % (T, T))
    s('v_xor_b32 v%d, v%d, v%d' % (T + 1, T + 1, T + 2))
    s('v_lshl_add_u32 v%d, v%d, 4, v%d' % (T + 3, T + 1, T))
    s('v_xor_b32 v%d, 4, v%d' % (T + 1, T + 1))
    s('v_lshl_add_u32 v%d, v%d, 4, v%d' % (T + 4, T + 1, T))
    for j in range(8):
        s('v_add_u32 v%d, 0x%x, v%d' % (DX + j, j * 8 * 2048 - (j % 4) * 1024, T + 3 + (j & 1)))
    s('v_and_b32 v%d, 15, v%d' % (T + 5, LANE))
    s('s_lshl_b32 s33, s30, 4')
    s('v_add_u32 v%d, s33, v%d' % (T, T + 2))
    s('v_lshlrev_b32 v%d, 13, v%d' % (T, T))
    s('v_lshlrev_b32 v%d, 1, v%d' % (T + 1, T + 2))
    s('v_xor_b32 v%d, v%d, v%d' % (T + 1, T + 1, T + 5))
    s('v_lshl_add_u32 v%d, v%d, 4, v%d' % (T + 3, T + 1, T))
    s('v_xor_b32 v%d, 8, v%d' % (T + 1, T + 1))
    s('v_lshl_add_u32 v%d, v%d, 4, v%d' % (T + 4, T + 1, T))
    for j in range(4):
        s('v_add_u32 v%d, 0x%x, v%d' % (DW + j, j * 4 * 8192 - j * 1024, T + 3 + (j >> 1)))
    s('s_waitcnt lgkmcnt(0)')
    s('s_mov_b32 s12, s10')
    s('s_mov_b32 s13, s11')
    srd(s, 8, 8, 32 * 2048 * 128 * 2)
    srd(s, 12, 12, 32 * 2048 * 128 * 2)
    srd(s, 20, 20, 1024 * 4096 * 2)
    srd(s, 16, 4, 2048 * 1024 * 2, L.WS['h'][0])
    srd(s, 24, 4, 2048 * 4096 * 2, L.WS['o'][0])
    s('s_lshl_b32 s34, s32, 19')
    s('s_lshl_b32 s35, s31, 8')
    s('s_lshl_b32 s36, s30, 13')
    s('s_lshl_b32 s37, s30, 12')
    s('s_add_u32 s37, s37, 32768')
    SB = 49152

    def qdma(slot):
        out = []
        for j in range(8):
            if j % 4 == 0:
                out.append('s_add_u32 m0, s36, %d' % (slot * SB + j * 1024))
            out.append('buffer_load_dwordx4 v%d, s[16:19], s34 offen offset:%d lds' % (DX + j, (j % 4) * 1024))
        out.append('s_add_u32 m0, s37, %d' % (slot * SB))
        for j in range(4):
            out.append('buffer_load_dwordx4 v%d, s[20:23], s35 offen offset:%d lds' % (DW + j, j * 1024))
        out.append('s_add_u32 s34, s34, 128')
        out.append('s_add_u32 s35, s35, %d' % (64 * 8192))
        return out

    for st in range(2):
        for t in qdma(st):
            s(t)
    g, i15 = T + 2, T + 5
    s('s_lshl_b32 s33, s30, 4')
    s('v_add_u32 v%d, s33, v%d' % (T, g))
    s('v_lshlrev_b32 v%d, 8, v%d' % (T, T))
    s('v_xor_b32 v%d, v%d, v%d' % (T + 1, i15, g))
    for j in range(4):
        s('v_xor_b32 v%d, %d, v%d' % (T + 3, 4 * j, T + 1))
        s('v_lshl_add_u32 v%d, v%d, 4, v%d' % (DK + j, T + 3, T))
    s('v_lshlrev_b32 v%d, 1, v%d' % (T + 1, g))
    s('v_xor_b32 v%d, v%d, v%d' % (T + 1, T + 1, i15))
    s('v_lshl_add_u32 v%d, v%d, 4, v%d' % (DV, T + 1, T))
    s('v_xor_b32 v%d, 8, v%d' % (T + 1, T + 1))
    s('v_lshl_add_u32 v%d, v%d, 4, v%d' % (DV + 1, T + 1, T))
    s('s_lshl_b32 s40, s31, 19')
    s('s_mov_b32 s41, s40')
    s('s_lshl_b32 s44, s30, 12')
    s('s_mov_b32 s45, 0x40004000')
    for t in dma_v(0):
        s(t)
    s('v_lshrrev_b32 v%d, 1, v%d' % (T, i15))
    s('v_xor_b32 v%d, v%d, v%d' % (T, T, g))
    s('v_lshlrev_b32 v%d, 7, v%d' % (T + 1, i15))
    s('v_add_u32 v%d, s36, v%d' % (T + 1, T + 1))
    s('v_lshl_add_u32 v%d, v%d, 4, v%d' % (XA, T, T + 1))
    s('v_xor_b32 v%d, 4, v%d' % (T, T))
    s('v_lshl_add_u32 v%d, v%d, 4, v%d' % (XA + 1, T, T + 1))
    s('v_lshrrev_b32 v%d, 2, v%d' % (T, i15))
    s('v_and_b32 v%d, 1, v%d' % (T + 1, g))
    s('v_lshl_or_b32 v%d, v%d, 2, v%d' % (T + 6, T + 1, T))
    s('v_and_b32 v%d, 3, v%d' % (T + 7, i15))
    s('v_lshlrev_b32 v%d, 3, v%d' % (T + 7, T + 7))
    s('v_lshl_add_u32 v%d, v%d, 3, v%d' % (T + 1, g, T))
    s('v_lshl_add_u32 v%d, v%d, 8, v%d' % (T + 1, T + 1, T + 7))
    s('v_add_u32 v%d, 32768, v%d' % (T + 1, T + 1))
    for u in range(8):
        s('v_xor_b32 v%d, %d, v%d' % (T + 3, u, T + 6))
        s('v_lshl_add_u32 v%d, v%d, 5, v%d' % (VA + u, T + 3, T + 1))
    s('v_and_b32 v%d, 1, v%d' % (T, g))
    s('v_lshrrev_b32 v%d, 1, v%d' % (T + 1, g))
    s('v_lshl_or_b32 v%d, v%d, 1, v%d' % (T, T, T + 1))
    s('v_xor_b32 v%d, v%d, v%d' % (T, T, i15))
    s('v_lshlrev_b32 v%d, 8, v%d' % (T + 1, i15))
    s('v_add_u32 v%d, %d, v%d' % (T + 1, KBASE, T + 1))
    for ss in range(4):
        s('v_xor_b32 v%d, %d, v%d' % (T + 3, 4 * ss, T))
        s('v_lshl_add_u32 v%d, v%d, 4, v%d' % (KA + ss, T + 3, T + 1))
    lane_noff(s, T, LANE, T + 1)
    s('s_lshl_b32 s33, s31, 7')
    s('v_add_u32 v%d, s33, v%d' % (T, T))
    s('s_lshl_b32 s33, s32, 8')
    s('s_lshl_b32 s38, s30, 6')
    s('s_add_u32 s33, s33, s38')
    s('v_add_u32 v%d, s33, v%d' % (T + 1, i15))
    s('v_lshlrev_b32 v%d, 13, v%d' % (T + 1, T + 1))
    s('v_lshl_add_u32 v%d, v%d, 1, v%d' % (OA, T, T + 1))
    for r in range(128):
        s('v_mov_b32 v%d, 0' % r)

    def qreads(buf, ks):
        fb = buf * 48
        wl, xl = [], []
        for u in range(8):
            for rr in range(2):
                d = fb + 16 + u * 4 + 2 * rr
                wl.append('ds_read_b64_tr_b16 a[%d:%d], v%d offset:%d' % (d, d + 1, VA + u, (32 * ks + 4 * rr) * 256))
        for qg in range(4):
            d = fb + qg * 4
            xl.append('ds_read_b128 a[%d:%d], v%d offset:%d' % (d, d + 3, XA + ks, qg * 2048))
        return wl[:2] + xl + wl[2:]

    def qmf(buf):
        fb = buf * 48
        out = []
        for u in range(8):
            for qg in range(4):
                d = (u * 4 + qg) * 4
                out.append(mf(d, 'v', fb + 16 + u * 4, 'a', fb + qg * 4, 'a', d, 'v'))
        return out

    def qadv(delta_s):
        return ['v_add_u32 v%d, %s, v%d' % (r, delta_s, r) for r in list(range(XA, XA + 2)) + list(range(VA, VA + 8))]

    s('s_mov_b32 s46, %d' % SB)
    s('s_mov_b32 s47, 0x%x' % ((-2 * SB) & 0xffffffff))
    s('s_waitcnt vmcnt(16)')
    s('s_barrier')
    for t in qreads(0, 0):
        s(t)
    s('s_mov_b32 s3, 4')

    def qbody(seg, st, dma, nwait, last=False):
        interleave(seg, qmf(0), qreads(1, 1), per=None)
        fl = []
        if not last:
            for t in qadv('s47' if st % 3 == 2 else 's46'):
                seg(t)
            seg('s_waitcnt vmcnt(%d)' % nwait)
            seg('s_barrier')
            fl = qreads(0, 0) + dma
        else:
            seg('s_barrier')
            fl = dma
        interleave(seg, qmf(1), fl, per=None)

    ql = k.seg('qloop')
    ql.label('attn_qloop')
    for st in range(3):
        qbody(ql, st, qdma((st + 2) % 3), 0)
    ql('s_sub_u32 s3, s3, 1')
    ql('s_cmp_lg_u32 s3, 0')
    ql('s_cbranch_scc1 attn_qloop')
    qt = k.seg('qtail')
    qbody(qt, 12, qdma(14 % 3), 0)
    qbody(qt, 13, qdma(15 % 3), 0)
    qbody(qt, 14, dma_k(0) + dma_k(1) + dma_k(2), 0)
    qbody(qt, 15, dma_v(1), 0, last=True)
    m = k.seg('mid')
    m('s_mov_b32 s48, 0x%x' % QSCALE)
    for ss in range(4):
        for qg in range(4):
            r0 = ((2 * ss) * 4 + qg) * 4
            r1 = ((2 * ss + 1) * 4 + qg) * 4
            for r in range(4):
                m('v_mul_f32 v%d, s48, v%d' % (r0 + r, r0 + r))
                m('v_mul_f32 v%d, s48, v%d' % (r1 + r, r1 + r))
            t = P + (qg & 1) * 4
            m('v_cvt_pk_bf16_f32 v%d, v%d, v%d' % (t, r0, r0 + 1))
            m('v_cvt_pk_bf16_f32 v%d, v%d, v%d' % (t + 1, r0 + 2, r0 + 3))
            m('v_cvt_pk_bf16_f32 v%d, v%d, v%d' % (t + 2, r1, r1 + 1))
            m('v_cvt_pk_bf16_f32 v%d, v%d, v%d' % (t + 3, r1 + 2, r1 + 3))
            m('v_permlane16_swap_b32 v%d, v%d' % (t, t + 2))
            m('v_permlane16_swap_b32 v%d, v%d' % (t + 1, t + 3))
            for r in range(4):
                m('v_accvgpr_write_b32 a%d, v%d' % (Q + (ss * 4 + qg) * 4 + r, t + r))
    m('v_lshrrev_b32 v%d, 2, v%d' % (T, i15))
    m('v_lshl_add_u32 v%d, v%d, 2, v%d' % (T + 1, g, T))
    m('v_lshl_add_u32 v%d, v%d, 8, v%d' % (T + 1, T + 1, T + 7))
    m('v_add_u32 v%d, %d, v%d' % (T + 1, VBASE, T + 1))
    for u in range(8):
        m('v_xor_b32 v%d, %d, v%d' % (T + 3, u, T + 6))
        m('v_lshl_add_u32 v%d, v%d, 5, v%d' % (VA + u, T + 3, T + 1))
    for r in range(128):
        m('v_accvgpr_write_b32 a%d, 0' % (O + r))
    for r in range(16):
        m('v_accvgpr_write_b32 a%d, 0' % (LS + r))
    m('v_mov_b32 v%d, 0x3f803f80' % T)
    for r in range(4):
        m('v_accvgpr_write_b32 a%d, v%d' % (ONES + r, T))
    m('s_waitcnt vmcnt(4)')
    m('s_barrier')
    for t in dma_k(3) + dma_v(2):
        m(t)
    for n in range(8):
        for t in kread(0, n, n):
            m(t)
    for n in range(16):
        kt, ss = n >> 2, n & 3
        for qg in range(4):
            d = Sreg(0, kt, qg)
            m(mf(d, 'v', FRG + (n % 8) * 4, 'a', Q + (ss * 4 + qg) * 4, 'a', 0 if ss == 0 else d, None if ss == 0 else 'v'))
        if n + 8 < 16:
            for t in kread(0, n + 8, n % 8):
                m(t)
        elif n + 8 - 16 < LEAD:
            for t in kread(1, n + 8 - 16, n % 8):
                m(t)
    D, TT = T + 8, T + 12
    rowmax(m, sregs(0, [0, 1, 2, 3]), D, TT)
    for qg in range(4):
        m('v_add_f32 v%d, 0x%x, v%d' % (D + qg, TB_HEX, D + qg))
    for qg in range(4):
        for r in range(4):
            m('v_sub_f32 v%d, 0, v%d' % (MN + qg * 4 + r, D + qg))
        for kt in range(4):
            for r in range(4):
                x = Sreg(0, kt, qg) + r
                m('v_sub_f32 v%d, v%d, v%d' % (x, x, D + qg))
    for gq in softmax_half(0, 0)[:NA_TAIL]:
        for _, t in gq:
            m(t)
    m('s_mov_b32 s3, 7')
    stubs = []
    lp = k.seg('loop')
    lp.label('attn_loop')
    for i in range(4):
        print('body', i, body(k, lp, i, stubs))
    lp('s_sub_u32 s3, s3, 1')
    lp('s_cmp_lg_u32 s3, 0')
    lp('s_cbranch_scc1 attn_loop')
    tl = k.seg('tail')
    body(k, tl, 0, stubs, dmak=False, vmw=12)
    body(k, tl, 1, stubs, dmak=False, dmav=False, vmw=8)
    body(k, tl, 2, stubs, dmak=False, dmav=False, vmw=4, nkq=False)
    body(k, tl, 3, stubs, do_qk=False, dmak=False, dmav=False, vmw=0, nkq=False)
    e = k.seg('epi')
    for qg in range(4):
        e('v_accvgpr_read_b32 v%d, a%d' % (T + qg, LS + qg * 4))
    for qg in range(4):
        e('v_rcp_f32 v%d, v%d' % (T + qg, T + qg))
    e('s_mov_b32 s33, 0')
    n = 0
    for qg in range(4):
        for dp in range(4):
            b = (n % 8) * 12
            n += 1
            for hh in range(2):
                for r in range(4):
                    e('v_accvgpr_read_b32 v%d, a%d' % (b + hh * 4 + r, O + ((2 * dp + hh) * 4 + qg) * 4 + r))
            for r in range(8):
                e('v_mul_f32 v%d, v%d, v%d' % (b + r, b + r, T + qg))
            for j in range(4):
                e('v_cvt_pk_bf16_f32 v%d, v%d, v%d' % (b + 8 + j, b + 2 * j, b + 2 * j + 1))
            e('v_permlane16_swap_b32 v%d, v%d' % (b + 8, b + 10))
            e('v_permlane16_swap_b32 v%d, v%d' % (b + 9, b + 11))
            e('buffer_store_dwordx4 v[%d:%d], v%d, s[24:27], s33 offen offset:%d' % (b + 8, b + 11, OA, dp * 64))
        if qg < 3:
            e('s_add_u32 s33, s33, %d' % (16 * 8192))
    e.label('attn_end')
    e('s_endpgm')
    variants = {}
    for _, _, c, ks, rp in stubs:
        variants.setdefault((c, ks, rp), 'slow_%d' % len(variants))
    st = k.seg('stubs')
    for stub, back, c, ks, rp in stubs:
        st.label(stub)
        st('s_call_b64 s[60:61], attn_%s' % variants[(c, ks, rp)])
        st('s_branch %s' % back)
    names = []
    for (c, ks, rp), nm in variants.items():
        sp = k.seg(nm)
        sp.label('attn_' + nm)
        slow_path(sp, c, ks, rp)
        names.append(nm)
    k.trace('pro', 'qloop', 'qloop', 'qtail', 'mid', 'loop', 'loop', 'tail', 'epi')
    for nm in names:
        k.trace(nm)
    return k


if __name__ == '__main__':
    open('attn.s', 'w').write(build_file([k_attn()]))
```

```python
from asmlib import *
import layout as L
from k_small import srd, rnd_bf16, unpack

NLOG2E = 0xbfb8aa3b


def interleave(seg, mfmas, fillers, per=2, start=0):
    n = len(mfmas)
    nf = len(fillers)
    fi = 0
    for i, m in enumerate(mfmas):
        seg(m)
        if i < start:
            continue
        want = min(nf, ((i - start + 1) * nf + (n - start) - 1) // (n - start)) if per is None else min(nf, fi + per)
        while fi < want:
            seg(fillers[fi])
            fi += 1
    while fi < nf:
        seg(fillers[fi])
        fi += 1


def gemm(name, *, xoff, xstride, xbytes, wka, wstride, wbytes, TM, TN, ksteps, NS, mapfn, epi, nwg=256,
         kbase_x=None, dbg_nomfma=False):
    WM, WN = TM // 2, TN // 2
    a, b = WM // 16, WN // 16
    nx, nw = TM // 32, TN // 32
    cpr = TN // 8
    XB = TM * 128
    WB = 64 * TN * 2
    SB = XB + WB
    assert NS * SB <= 160 * 1024
    rowb = TN * 2
    ACC = 0
    nacc = a * b * 4
    FR = nacc
    fsz = (a + b) * 4
    R = FR + 2 * fsz
    VX = R; R += nx
    VW = R; R += nw
    AX = R; R += 2
    if TN == 224:
        nAW = 2
    else:
        nAW = b
    AW = R; R += nAW
    T = R; R += 8
    EP = (R + 3) // 4 * 4
    nep = epi.nregs(a, b)
    R = EP + nep
    assert R <= 256, R
    k = Kernel(name, vgprs=R, grid=(nwg, 1, 1), block=(256, 1, 1), lds=NS * SB, sgprs=64)
    s = k.seg('pro')
    s('s_cmp_ge_u32 s2, %d' % nwg)
    s('s_cbranch_scc1 %s_end' % name)
    s('s_load_dwordx2 s[4:5], s[0:1], %d' % L.KA['ws'])
    s('s_load_dwordx2 s[12:13], s[0:1], %d' % wka)
    epi.load_args(s)
    s('v_and_b32 v%d, 63, v0' % T)
    s('v_lshrrev_b32 v%d, 6, v0' % (T + 1))
    s('v_readfirstlane_b32 s20, v%d' % (T + 1))
    mapfn(s)
    s('v_lshrrev_b32 v%d, 3, v%d' % (T + 2, T))
    s('v_and_b32 v%d, 7, v%d' % (T + 3, T))
    s('v_lshrrev_b32 v%d, 4, v%d' % (T + 4, T))
    s('s_mul_i32 s24, s20, %d' % (nx * 8))
    s('v_add_u32 v%d, s24, v%d' % (T + 2, T + 2))
    s('s_mov_b32 s24, %d' % xstride)
    s('v_mul_lo_u32 v%d, v%d, s24' % (T + 2, T + 2))
    s('v_xor_b32 v%d, v%d, v%d' % (T + 3, T + 3, T + 4))
    s('v_lshl_add_u32 v%d, v%d, 4, v%d' % (T + 5, T + 3, T + 2))
    s('v_xor_b32 v%d, 4, v%d' % (T + 3, T + 3))
    s('v_lshl_add_u32 v%d, v%d, 4, v%d' % (T + 6, T + 3, T + 2))
    assert nx % 2 == 0
    for j in range(nx):
        s('v_add_u32 v%d, 0x%x, v%d' % (VX + j, (j * 8 * xstride - (j % 4) * 1024) & 0xffffffff, T + 5 + (j & 1)))
    s('s_mul_i32 s24, s20, %d' % (nw * 64))
    s('s_mov_b32 s25, %d' % wstride)
    for j in range(nw):
        p, row, ch, f = T + 2, T + 3, T + 5, T + 6
        s('v_add_u32 v%d, s24, v%d' % (p, T))
        if j:
            s('v_add_u32 v%d, %d, v%d' % (p, j * 64, p))
        if cpr & (cpr - 1) == 0:
            s('v_lshrrev_b32 v%d, %d, v%d' % (row, cpr.bit_length() - 1, p))
            s('v_and_b32 v%d, %d, v%d' % (ch, cpr - 1, p))
        else:
            assert cpr == 28
            for pp in range(64 * 28):
                assert (pp * 9363) >> 18 == pp // 28
            s('v_mul_u32_u24 v%d, 9363, v%d' % (row, p))
            s('v_lshrrev_b32 v%d, 18, v%d' % (row, row))
            s('v_mul_u32_u24 v%d, 28, v%d' % (ch, row))
            s('v_sub_u32 v%d, v%d, v%d' % (ch, p, ch))
        if TN == 128:
            s('v_bfe_u32 v%d, v%d, 3, 1' % (f, row))
            s('v_lshlrev_b32 v%d, 2, v%d' % (f, f))
            s('v_and_or_b32 v%d, v%d, 3, v%d' % (f, row, f))
            s('v_lshlrev_b32 v%d, 1, v%d' % (f, f))
        elif TN == 64:
            s('v_bfe_u32 v%d, v%d, 3, 1' % (f, row))
            s('v_lshlrev_b32 v%d, 2, v%d' % (f, f))
            s('v_and_or_b32 v%d, v%d, 2, v%d' % (f, row, f))
        else:
            s('v_bfe_u32 v%d, v%d, 3, 1' % (f, row))
            s('v_lshlrev_b32 v%d, 1, v%d' % (f, f))
        s('v_xor_b32 v%d, v%d, v%d' % (ch, ch, f))
        s('v_mul_lo_u32 v%d, v%d, s25' % (row, row))
        s('v_lshl_add_u32 v%d, v%d, 4, v%d' % (VW + j, ch, row))
        if j % 4:
            s('v_subrev_u32 v%d, %d, v%d' % (VW + j, (j % 4) * 1024, VW + j))
    s('s_waitcnt lgkmcnt(0)')
    srd(s, 8, 4, xbytes, xoff)
    srd(s, 12, 12, wbytes)
    s('s_mul_i32 s30, s21, %d' % (TM * xstride))
    s('s_mul_i32 s24, s23, %d' % (ksteps * 128))
    s('s_add_u32 s30, s30, s24')
    s('s_mul_i32 s31, s22, %d' % (TN * 2))
    s('s_mul_i32 s24, s23, %d' % (ksteps * 64 * wstride))
    s('s_add_u32 s31, s31, s24')
    s('s_mul_i32 s32, s20, %d' % (nx * 1024))
    s('s_mul_i32 s33, s20, %d' % (nw * 1024))
    s('s_add_u32 s33, s33, %d' % XB)
    s('s_mov_b32 s34, 0')

    def dma_list():
        out = []
        for j in range(nx):
            if j % 4 == 0:
                if j == 0:
                    out.append('s_add_u32 m0, s32, s34')
                else:
                    out.append('s_add_u32 m0, m0, 4096')
            out.append('buffer_load_dwordx4 v%d, s[8:11], s30 offen offset:%d lds' % (VX + j, (j % 4) * 1024))
        for j in range(nw):
            if j % 4 == 0:
                if j == 0:
                    out.append('s_add_u32 m0, s33, s34')
                else:
                    out.append('s_add_u32 m0, m0, 4096')
            out.append('buffer_load_dwordx4 v%d, s[12:15], s31 offen offset:%d lds' % (VW + j, (j % 4) * 1024))
        out.append('s_add_u32 s30, s30, 128')
        out.append('s_add_u32 s31, s31, %d' % (64 * wstride))
        out.append('s_add_u32 s34, s34, %d' % SB)
        out.append('s_cmp_ge_u32 s34, %d' % (NS * SB))
        out.append('s_cselect_b32 s34, 0, s34')
        return out

    for st in range(NS - 1):
        for t in dma_list():
            s(t)
    nd = nx + nw
    s('s_lshr_b32 s35, s20, 1')
    s('s_and_b32 s36, s20, 1')
    lane = T
    s('v_and_b32 v%d, 15, v%d' % (T + 2, lane))
    s('v_lshrrev_b32 v%d, 4, v%d' % (T + 3, lane))
    s('v_lshrrev_b32 v%d, 1, v%d' % (T + 4, T + 2))
    s('v_xor_b32 v%d, v%d, v%d' % (T + 4, T + 4, T + 3))
    s('s_mul_i32 s24, s35, %d' % (WM * 128))
    s('v_lshlrev_b32 v%d, 7, v%d' % (T + 5, T + 2))
    s('v_add_u32 v%d, s24, v%d' % (T + 5, T + 5))
    s('v_lshl_add_u32 v%d, v%d, 4, v%d' % (AX, T + 4, T + 5))
    s('v_xor_b32 v%d, 4, v%d' % (T + 4, T + 4))
    s('v_lshl_add_u32 v%d, v%d, 4, v%d' % (AX + 1, T + 4, T + 5))
    s('v_lshrrev_b32 v%d, 2, v%d' % (T + 4, T + 2))
    s('v_lshl_add_u32 v%d, v%d, 3, v%d' % (T + 5, T + 3, T + 4))
    s('v_mul_u32_u24 v%d, %d, v%d' % (T + 5, rowb, T + 5))
    s('v_and_b32 v%d, 3, v%d' % (T + 6, T + 2))
    s('v_lshl_add_u32 v%d, v%d, 3, v%d' % (T + 5, T + 6, T + 5))
    s('v_add_u32 v%d, %d, v%d' % (T + 5, XB, T + 5))
    s('v_and_b32 v%d, 1, v%d' % (T + 6, T + 3))
    if TN == 128:
        s('v_lshl_or_b32 v%d, v%d, 2, v%d' % (T + 6, T + 6, T + 4))
    elif TN == 64:
        s('v_lshrrev_b32 v%d, 1, v%d' % (T + 4, T + 4))
        s('v_lshl_or_b32 v%d, v%d, 1, v%d' % (T + 6, T + 6, T + 4))
    s('s_mul_i32 s24, s36, %d' % b)
    for u in range(nAW):
        s('s_add_u32 s25, s24, %d' % u)
        s('v_xor_b32 v%d, s25, v%d' % (T + 4, T + 6))
        s('v_lshl_add_u32 v%d, v%d, 5, v%d' % (AW + u, T + 4, T + 5))
    epi.prefetch(s, EP, T, a, b, WM, WN, TM, TN)
    for r in range(nacc):
        s('v_mov_b32 v%d, 0' % (ACC + r))
    s('s_mov_b32 s37, 0')

    def reads(buf, ks):
        out = []
        fb = FR + buf * fsz
        wl = []
        for u in range(b):
            if TN == 224:
                ar, off = AW + (u & 1), (u >> 1) * 64
            else:
                ar, off = AW + u, 0
            for rr in range(2):
                d = fb + (a + u) * 4 + 2 * rr
                wl.append('ds_read_b64_tr_b16 v[%d:%d], v%d offset:%d' % (d, d + 1, ar, off + (32 * ks + 4 * rr) * rowb))
        xl = []
        for m in range(a):
            d = fb + m * 4
            xl.append('ds_read_b128 v[%d:%d], v%d offset:%d' % (d, d + 3, AX + ks, m * 2048))
        out = wl[:2] + xl + wl[2:]
        return out

    def mfmas(buf):
        fb = FR + buf * fsz
        out = []
        for u in range(b):
            for m in range(a):
                d = ACC + (u * a + m) * 4
                A = fb + (a + u) * 4
                B = fb + m * 4
                out.append('v_mfma_f32_16x16x32_bf16 v[%d:%d], v[%d:%d], v[%d:%d], v[%d:%d]' % (d, d + 3, A, A + 3, B, B + 3, d, d + 3))
        if dbg_nomfma:
            out = out[:2]
        return out

    def adv():
        out = ['s_add_u32 s37, s37, %d' % SB,
               's_cmp_ge_u32 s37, %d' % (NS * SB),
               's_cselect_b32 s38, %d, %d' % (-(NS - 1) * SB, SB) if False else 's_cselect_b32 s38, s39, s40',
               's_cselect_b32 s37, 0, s37']
        for r in list(range(AX, AX + 2)) + list(range(AW, AW + nAW)):
            out.append('v_add_u32 v%d, s38, v%d' % (r, r))
        return out

    s('s_mov_b32 s39, 0x%x' % ((-(NS - 1) * SB) & 0xffffffff))
    s('s_mov_b32 s40, %d' % SB)
    s('s_waitcnt vmcnt(%d)' % min(63, (NS - 2) * nd + epi.nloads(a, b)))
    s('s_barrier')
    for t in reads(0, 0):
        s(t)
    nmain = ksteps - (NS - 1)
    s('s_mov_b32 s3, %d' % nmain)

    def body(seg, dma, n_wait, last=False):
        interleave(seg, mfmas(0), reads(1, 1), per=None)
        if not last:
            for t in adv():
                seg(t)
            seg('s_waitcnt vmcnt(%d)' % n_wait)
            seg('s_barrier')
            fl = reads(0, 0) + (dma_list() if dma else [])
        else:
            fl = []
        interleave(seg, mfmas(1), fl, per=None)

    lp = k.seg('loop')
    lp.label(name + '_loop')
    body(lp, True, min(63, (NS - 3) * nd))
    lp('s_sub_u32 s3, s3, 1')
    lp('s_cmp_lg_u32 s3, 0')
    lp('s_cbranch_scc1 %s_loop' % name)
    tl = k.seg('tail')
    for i in range(NS - 1):
        body(tl, False, max(0, (NS - 3 - i)) * nd, last=(i == NS - 2))
    e = k.seg('epi')
    epi.emit(e, ACC, EP, T, FR, a, b, WM, WN, TM, TN)
    e.label(name + '_end')
    e('s_endpgm')
    k.trace('pro', 'loop', 'loop', 'loop', 'tail', 'epi')
    return k


def swap_pairs(e, ACC, a, b):
    for u in range(0, b - 1, 2):
        for m in range(a):
            for r in range(4):
                e('v_permlane16_swap_b32 v%d, v%d' % (ACC + (u * a + m) * 4 + r, ACC + ((u + 1) * a + m) * 4 + r))


def lane_noff(s, dst, lane, t):
    s('v_lshrrev_b32 v%d, 4, v%d' % (t, lane))
    s('v_and_b32 v%d, 1, v%d' % (dst, t))
    s('v_lshlrev_b32 v%d, 4, v%d' % (dst, dst))
    s('v_lshrrev_b32 v%d, 1, v%d' % (t, t))
    s('v_lshl_add_u32 v%d, v%d, 3, v%d' % (dst, t, dst))


class EpiBase:
    def load_args(self, s): pass
    def nregs(self, a, b): return 4
    def nloads(self, a, b): return 0

    def out_addr(self, s, dst, T, WM, WN, TM, TN, ostride):
        lane = T
        lane_noff(s, T + 2, lane, T + 3)
        s('s_mul_i32 s24, s22, %d' % TN)
        s('s_mul_i32 s25, s36, %d' % WN)
        s('s_add_u32 s24, s24, s25')
        s('v_add_u32 v%d, s24, v%d' % (T + 2, T + 2))
        s('s_mul_i32 s25, s21, %d' % TM)
        s('s_mul_i32 s26, s35, %d' % WM)
        s('s_add_u32 s25, s25, s26')
        s('v_and_b32 v%d, 15, v%d' % (T + 3, lane))
        s('v_add_u32 v%d, s25, v%d' % (T + 3, T + 3))
        s('s_mov_b32 s26, %d' % ostride)
        s('v_mul_lo_u32 v%d, v%d, s26' % (T + 3, T + 3))
        s('v_lshl_add_u32 v%d, v%d, 1, v%d' % (dst, T + 2, T + 3))


class EpiPartial(EpiBase):
    def prefetch(self, s, EP, T, a, b, WM, WN, TM, TN):
        self.out_addr(s, EP, T, WM, WN, TM, TN, 2048)
        srd(s, 16, 4, 2 * 2048 * 1024 * 2, L.WS['p'][0])
        s('s_mul_i32 s41, s23, %d' % (2048 * 1024 * 2))

    def emit(self, e, ACC, EP, T, FR, a, b, WM, WN, TM, TN):
        swap_pairs(e, ACC, a, b)
        i = 0
        for m in range(a):
            for u in range(0, b, 2):
                d = FR + (i % 4) * 4
                i += 1
                r0 = ACC + (u * a + m) * 4
                r1 = ACC + ((u + 1) * a + m) * 4
                e('v_cvt_pk_bf16_f32 v%d, v%d, v%d' % (d, r0, r0 + 1))
                e('v_cvt_pk_bf16_f32 v%d, v%d, v%d' % (d + 1, r0 + 2, r0 + 3))
                e('v_cvt_pk_bf16_f32 v%d, v%d, v%d' % (d + 2, r1, r1 + 1))
                e('v_cvt_pk_bf16_f32 v%d, v%d, v%d' % (d + 3, r1 + 2, r1 + 3))
                e('buffer_store_dwordx4 v[%d:%d], v%d, s[16:19], s41 offen offset:%d' % (d, d + 3, EP, u * 32))
            if m < a - 1:
                e('s_add_u32 s41, s41, %d' % (16 * 2048))


class EpiGelu(EpiBase):
    def load_args(self, s):
        s('s_load_dwordx2 s[44:45], s[0:1], %d' % L.KA['b1'])

    def nregs(self, a, b): return 4 + 4 * ((b + 1) // 2)
    def nloads(self, a, b): return (b + 1) // 2

    def prefetch(self, s, EP, T, a, b, WM, WN, TM, TN):
        self.out_addr(s, EP, T, WM, WN, TM, TN, 7168)
        srd(s, 16, 4, 2048 * 3584 * 2, L.WS['h1'][0])
        srd(s, 44, 44, 3584 * 2)
        s('v_lshlrev_b32 v%d, 1, v%d' % (T + 2, T + 2))
        for u in range(0, b - 1, 2):
            s('buffer_load_dwordx4 v[%d:%d], v%d, s[44:47], 0 offen offset:%d' % (EP + 4 + 2 * u, EP + 7 + 2 * u, T + 2, u * 32))
        if b & 1:
            lane = T
            s('v_lshrrev_b32 v%d, 4, v%d' % (T + 4, lane))
            s('v_lshlrev_b32 v%d, 2, v%d' % (T + 4, T + 4))
            s('v_add_u32 v%d, s24, v%d' % (T + 4, T + 4))
            s('v_lshlrev_b32 v%d, 1, v%d' % (T + 4, T + 4))
            s('v_add_u32 v%d, v%d, v%d' % (EP + 1, T + 4, T + 3))
            s('buffer_load_dwordx2 v[%d:%d], v%d, s[44:47], 0 offen offset:%d' % (EP + 4 + 2 * (b - 1), EP + 5 + 2 * (b - 1), T + 4, (b - 1) * 32))
        s('s_mov_b32 s41, 0')
        s('s_mov_b32 s42, 0x%x' % 0xc0135761)
        s('s_mov_b32 s43, 0x%x' % 0xbdd2d3e8)

    def gelu(self, e, regs, bias, t):
        n = len(regs)
        rnd_bf16(e, regs, t)
        for i in range(n):
            e('v_add_f32 v%d, v%d, v%d' % (regs[i], regs[i], bias + i))
        rnd_bf16(e, regs, t)
        for i in range(n):
            e('v_mul_f32 v%d, v%d, v%d' % (t + i, regs[i], regs[i]))
        for i in range(n):
            e('v_fma_f32 v%d, v%d, s43, v%d' % (t + i, t + i, t + 8))
        for i in range(n):
            e('v_mul_f32 v%d, v%d, v%d' % (t + i, t + i, regs[i]))
        for i in range(n):
            e('v_exp_f32 v%d, v%d' % (t + i, t + i))
        for i in range(n):
            e('v_add_f32 v%d, 1.0, v%d' % (t + i, t + i))
        for i in range(n):
            e('v_rcp_f32 v%d, v%d' % (t + i, t + i))
        for i in range(n):
            e('v_mul_f32 v%d, v%d, v%d' % (regs[i], regs[i], t + i))

    def emit(self, e, ACC, EP, T, FR, a, b, WM, WN, TM, TN):
        swap_pairs(e, ACC, a, b)
        t = FR
        e('v_mov_b32 v%d, s42' % (t + 8))
        BI = FR + 24
        for u in range(0, b - 1, 2):
            unpack(e, BI + 4 * u, EP + 4 + 2 * u, 4)
        if b & 1:
            unpack(e, BI + 4 * (b - 1), EP + 4 + 2 * (b - 1), 2)
        i = 0
        for m in range(a):
            for u in range(0, b, 2):
                d = FR + 12 + (i % 3) * 4
                i += 1
                r0 = ACC + (u * a + m) * 4
                if u + 1 < b:
                    r1 = ACC + ((u + 1) * a + m) * 4
                    regs = [r0, r0 + 1, r0 + 2, r0 + 3, r1, r1 + 1, r1 + 2, r1 + 3]
                else:
                    regs = [r0, r0 + 1, r0 + 2, r0 + 3]
                self.gelu(e, regs, BI + 4 * u, t)
                for j in range(len(regs) // 2):
                    e('v_cvt_pk_bf16_f32 v%d, v%d, v%d' % (d + j, regs[2 * j], regs[2 * j + 1]))
                if u + 1 < b:
                    e('buffer_store_dwordx4 v[%d:%d], v%d, s[16:19], s41 offen offset:%d' % (d, d + 3, EP, u * 32))
                else:
                    e('buffer_store_dwordx2 v[%d:%d], v%d, s[16:19], s41 offen offset:%d' % (d, d + 1, EP + 1, u * 32))
            if m < a - 1:
                e('s_add_u32 s41, s41, %d' % (16 * 7168))


class EpiFinal(EpiBase):
    def load_args(self, s):
        s('s_load_dwordx2 s[44:45], s[0:1], %d' % L.KA['b2'])
        s('s_load_dwordx2 s[16:17], s[0:1], %d' % L.KA['out'])

    def nregs(self, a, b): return 4 + (b // 2) * (4 + 8 + 4 * a)
    def nloads(self, a, b): return (b // 2) * (1 + 2 + a)

    def prefetch(self, s, EP, T, a, b, WM, WN, TM, TN):
        self.out_addr(s, EP, T, WM, WN, TM, TN, 2048)
        srd(s, 16, 16, 2048 * 1024 * 2)
        srd(s, 44, 44, 1024 * 2)
        srd(s, 48, 4, 6144 * 4, L.WS['mod'][0])
        srd(s, 52, 4, 2048 * 1024 * 2, L.WS['x1'][0])
        s('v_lshlrev_b32 v%d, 1, v%d' % (T + 4, T + 2))
        s('v_lshlrev_b32 v%d, 2, v%d' % (T + 5, T + 2))
        s('s_mov_b32 s42, %d' % (5 * 4096))
        r = EP + 4
        for u in range(0, b, 2):
            s('buffer_load_dwordx4 v[%d:%d], v%d, s[44:47], 0 offen offset:%d' % (r, r + 3, T + 4, u * 32))
            s('buffer_load_dwordx4 v[%d:%d], v%d, s[48:51], s42 offen offset:%d' % (r + 4, r + 7, T + 5, u * 64))
            s('buffer_load_dwordx4 v[%d:%d], v%d, s[48:51], s42 offen offset:%d' % (r + 8, r + 11, T + 5, u * 64 + 16))
            for m in range(a):
                s('s_mov_b32 s41, %d' % (m * 16 * 2048))
                s('buffer_load_dwordx4 v[%d:%d], v%d, s[52:55], s41 offen offset:%d' % (r + 12 + 4 * m, r + 15 + 4 * m, EP, u * 32))
            r += 12 + 4 * a
        s('s_mov_b32 s41, 0')

    def emit(self, e, ACC, EP, T, FR, a, b, WM, WN, TM, TN):
        swap_pairs(e, ACC, a, b)
        t = FR
        i = 0
        for m in range(a):
            r = EP + 4
            for u in range(0, b, 2):
                BI = FR + 32
                unpack(e, BI, r, 4)
                XR = FR + 8
                unpack(e, XR, r + 12 + 4 * m, 4)
                d = FR + 16 + (i % 3) * 4
                i += 1
                r0 = ACC + (u * a + m) * 4
                r1 = ACC + ((u + 1) * a + m) * 4
                regs = [r0, r0 + 1, r0 + 2, r0 + 3, r1, r1 + 1, r1 + 2, r1 + 3]
                rnd_bf16(e, regs, t)
                for j in range(8):
                    e('v_add_f32 v%d, v%d, v%d' % (regs[j], regs[j], BI + j))
                rnd_bf16(e, regs, t)
                for j in range(8):
                    e('v_mul_f32 v%d, v%d, v%d' % (regs[j], regs[j], r + 4 + j))
                rnd_bf16(e, regs, t)
                for j in range(8):
                    e('v_add_f32 v%d, v%d, v%d' % (regs[j], regs[j], XR + j))
                for j in range(4):
                    e('v_cvt_pk_bf16_f32 v%d, v%d, v%d' % (d + j, regs[2 * j], regs[2 * j + 1]))
                e('buffer_store_dwordx4 v[%d:%d], v%d, s[16:19], s41 offen offset:%d' % (d, d + 3, EP, u * 32))
                r += 12 + 4 * a
            if m < a - 1:
                e('s_add_u32 s41, s41, %d' % (16 * 2048))


def map_oproj(s):
    s('s_and_b32 s23, s2, 1')
    s('s_bfe_u32 s24, s2, 0x20001')
    s('s_lshr_b32 s25, s2, 3')
    s('s_and_b32 s22, s25, 7')
    s('s_lshr_b32 s25, s25, 3')
    s('s_lshl_b32 s21, s24, 2')
    s('s_add_u32 s21, s21, s25')


def map_up(s):
    s('s_mov_b32 s23, 0')
    s('s_and_b32 s24, s2, 1')
    s('s_bfe_u32 s25, s2, 0x20001')
    s('s_lshr_b32 s26, s2, 3')
    s('s_and_b32 s21, s26, 7')
    s('s_lshl_b32 s24, s24, 3')
    s('s_add_u32 s21, s21, s24')
    s('s_lshr_b32 s22, s26, 3')
    s('s_lshl_b32 s25, s25, 2')
    s('s_add_u32 s22, s22, s25')


def map_down(s):
    s('s_mov_b32 s23, 0')
    s('s_and_b32 s24, s2, 1')
    s('s_bfe_u32 s25, s2, 0x20001')
    s('s_lshr_b32 s26, s2, 3')
    s('s_and_b32 s22, s26, 7')
    s('s_lshl_b32 s24, s24, 3')
    s('s_add_u32 s22, s22, s24')
    s('s_lshr_b32 s21, s26, 3')
    s('s_lshl_b32 s25, s25, 2')
    s('s_add_u32 s21, s21, s25')


def k_oproj(**kw):
    return gemm('oproj_kernel', xoff=L.WS['o'][0], xstride=8192, xbytes=2048 * 8192, wka=L.KA['wo'], wstride=2048,
                wbytes=4096 * 2048, TM=128, TN=128, ksteps=32, NS=5, mapfn=map_oproj, epi=EpiPartial(), **kw)


def k_up(**kw):
    return gemm('up_kernel', xoff=L.WS['y'][0], xstride=2048, xbytes=2048 * 2048, wka=L.KA['w1'], wstride=7168,
                wbytes=1024 * 7168, TM=128, TN=224, ksteps=16, NS=3, mapfn=map_up, epi=EpiGelu(), **kw)


def k_down(**kw):
    return gemm('down_kernel', xoff=L.WS['h1'][0], xstride=7168, xbytes=2048 * 7168, wka=L.KA['w2'], wstride=2048,
                wbytes=3584 * 2048, TM=128, TN=64, ksteps=56, NS=6, mapfn=map_down, epi=EpiFinal(), **kw)
```

```python
from asmlib import *
import layout as L

LOG2E = 0x3fb8aa3b
NLOG2E = 0xbfb8aa3b


def srd(s, d, base, nbytes, off=0):
    if off:
        s('s_add_u32 s%d, s%d, 0x%x' % (d, base, off))
        s('s_addc_u32 s%d, s%d, 0' % (d + 1, base + 1))
    else:
        if d != base:
            s('s_mov_b32 s%d, s%d' % (d, base))
            s('s_mov_b32 s%d, s%d' % (d + 1, base + 1))
    s('s_mov_b32 s%d, 0x%x' % (d + 2, nbytes))
    s('s_mov_b32 s%d, 0x20000' % (d + 3))


def rnd_bf16(s, regs, tmp):
    for i in range(0, len(regs), 2):
        a, b = regs[i], regs[i + 1]
        s('v_cvt_pk_bf16_f32 v%d, v%d, v%d' % (tmp, a, b))
        s('v_lshlrev_b32 v%d, 16, v%d' % (a, tmp))
        s('v_and_b32 v%d, 0xffff0000, v%d' % (b, tmp))


def rnd1(s, r):
    s('v_cvt_pk_bf16_f32 v%d, v%d, v%d' % (r, r, r))
    s('v_lshlrev_b32 v%d, 16, v%d' % (r, r))


def unpack(s, dst, src, n):
    for i in range(n):
        s('v_and_b32 v%d, 0xffff0000, v%d' % (dst + 2 * i + 1, src + i))
        s('v_lshlrev_b32 v%d, 16, v%d' % (dst + 2 * i, src + i))


def wave_allreduce_add(s, r, t):
    for k in (1, 2, 4, 8):
        s('v_add_f32_dpp v%d, v%d, v%d row_ror:%d row_mask:0xf bank_mask:0xf' % (r, r, r, k))
    s('v_mov_b32 v%d, v%d' % (t, r))
    s('v_permlane16_swap_b32 v%d, v%d' % (t, r))
    s('v_add_f32 v%d, v%d, v%d' % (r, r, t))
    s('v_mov_b32 v%d, v%d' % (t, r))
    s('v_permlane32_swap_b32 v%d, v%d' % (t, r))
    s('v_add_f32 v%d, v%d, v%d' % (r, r, t))


def k_mod():
    NWG = 192
    k = Kernel('mod_kernel', vgprs=96, grid=(NWG, 1, 1), block=(256, 1, 1), lds=4096 + 2048, sgprs=48)
    s = k.seg('main')
    s('s_cmp_ge_u32 s2, %d' % NWG)
    s('s_cbranch_scc1 mod_end')
    s('s_load_dwordx4 s[4:7], s[0:1], %d' % L.KA['c'])
    s('s_load_dwordx2 s[16:17], s[0:1], %d' % L.KA['ws'])
    s('s_and_b32 s3, s2, 7')
    s('s_mul_i32 s3, s3, 24')
    s('s_lshr_b32 s20, s2, 3')
    s('s_add_u32 s3, s3, s20')
    s('s_lshl_b32 s21, s3, 6')
    s('v_lshrrev_b32 v1, 2, v0')
    s('v_and_b32 v2, 3, v0')
    s('s_mov_b32 s22, 12288')
    s('v_mul_lo_u32 v3, v1, s22')
    s('v_lshl_add_u32 v3, v2, 4, v3')
    s('v_lshlrev_b32 v4, 3, v0')
    s('s_waitcnt lgkmcnt(0)')
    srd(s, 8, 4, 2048)
    srd(s, 12, 6, 1024 * 6144 * 2)
    srd(s, 16, 16, 6144 * 4, L.WS['mod'][0])
    s('buffer_load_dwordx2 v[6:7], v4, s[8:11], 0 offen')
    for j in range(16):
        s('buffer_load_dwordx4 v[%d:%d], v3, s[12:15], s21 offen' % (32 + 4 * j, 35 + 4 * j))
        if j < 15:
            s('s_add_u32 s21, s21, %d' % (64 * 12288))
    unpack(s, 8, 6, 2)
    for i in range(4):
        s('v_mul_f32 v%d, 0x%x, v%d' % (12 + i, NLOG2E, 8 + i))
    for i in range(4):
        s('v_exp_f32 v%d, v%d' % (12 + i, 12 + i))
    for i in range(4):
        s('v_add_f32 v%d, 1.0, v%d' % (12 + i, 12 + i))
    for i in range(4):
        s('v_rcp_f32 v%d, v%d' % (12 + i, 12 + i))
    for i in range(4):
        s('v_mul_f32 v%d, v%d, v%d' % (8 + i, 8 + i, 12 + i))
    rnd_bf16(s, [8, 9, 10, 11], 12)
    s('v_lshlrev_b32 v5, 4, v0')
    s('ds_write_b128 v5, v[8:11]')
    s('s_waitcnt lgkmcnt(0)')
    s('s_barrier')
    s('v_lshlrev_b32 v5, 2, v1')
    for j in range(16):
        s('ds_read_b32 v%d, v5 offset:%d' % (16 + j, 256 * j))
    for i in range(8):
        s('v_mov_b32 v%d, 0' % (8 + i))
    for j in range(16):
        for i in range(4):
            w = 32 + 4 * j + i
            s('v_lshlrev_b32 v6, 16, v%d' % w)
            s('v_and_b32 v7, 0xffff0000, v%d' % w)
            s('v_fmac_f32 v%d, v6, v%d' % (8 + 2 * i, 16 + j))
            s('v_fmac_f32 v%d, v7, v%d' % (9 + 2 * i, 16 + j))
    for sh in (4, 8):
        for i in range(8):
            s('v_add_f32_dpp v%d, v%d, v%d row_ror:%d row_mask:0xf bank_mask:0xf' % (8 + i, 8 + i, 8 + i, sh))
    s('v_lshrrev_b32 v5, 4, v0')
    s('v_lshlrev_b32 v5, 7, v5')
    s('v_lshl_add_u32 v5, v2, 5, v5')
    s('v_and_b32 v6, 12, v0')
    s('v_cmp_eq_u32 vcc, 0, v6')
    s('s_and_saveexec_b64 s[24:25], vcc')
    s('ds_write_b128 v5, v[8:11] offset:4096')
    s('ds_write_b128 v5, v[12:15] offset:4112')
    s('s_mov_b64 exec, s[24:25]')
    s('s_waitcnt lgkmcnt(0)')
    s('s_barrier')
    s('v_cmp_gt_u32 vcc, 32, v0')
    s('s_and_saveexec_b64 s[24:25], vcc')
    s('s_cbranch_execz mod_end')
    s('v_lshlrev_b32 v5, 2, v0')
    for p in range(16):
        s('ds_read_b32 v%d, v5 offset:%d' % (16 + p, 4096 + 128 * p))
    for p in range(1, 16):
        s('v_add_f32 v16, v16, v%d' % (16 + p))
    rnd1(s, 16)
    s('s_lshl_b32 s21, s3, 7')
    s('buffer_store_dword v16, v5, s[16:19], s21 offen')
    s.label('mod_end')
    s('s_endpgm')
    return k


def ln_core(s, X, t0):
    a, b, c = t0, t0 + 1, t0 + 2
    s('v_add_f32 v%d, v%d, v%d' % (a, X, X + 1))
    s('v_add_f32 v%d, v%d, v%d' % (b, X + 2, X + 3))
    for i in range(4, 16, 2):
        s('v_add_f32 v%d, v%d, v%d' % (a, a, X + i))
        s('v_add_f32 v%d, v%d, v%d' % (b, b, X + i + 1))
    s('v_add_f32 v%d, v%d, v%d' % (a, a, b))
    wave_allreduce_add(s, a, b)
    s('v_mul_f32 v%d, 0x3a800000, v%d' % (a, a))
    s('v_sub_f32 v%d, v%d, v%d' % (c, X, a))
    s('v_mul_f32 v%d, v%d, v%d' % (b, c, c))
    for i in range(1, 16):
        s('v_sub_f32 v%d, v%d, v%d' % (c, X + i, a))
        s('v_fmac_f32 v%d, v%d, v%d' % (b, c, c))
    wave_allreduce_add(s, b, c)
    s('v_mul_f32 v%d, 0x3a800000, v%d' % (b, b))
    rnd1(s, a)
    rnd1(s, b)
    s('v_add_f32 v%d, 0x3727c5ac, v%d' % (b, b))
    rnd1(s, b)
    s('v_sqrt_f32 v%d, v%d' % (b, b))
    s('s_nop 0')
    rnd1(s, b)
    s('v_rcp_f32 v%d, v%d' % (b, b))
    for i in range(16):
        s('v_sub_f32 v%d, v%d, v%d' % (X + i, X + i, a))
    rnd_bf16(s, list(range(X, X + 16)), c)
    for i in range(16):
        s('v_mul_f32 v%d, v%d, v%d' % (X + i, X + i, b))


def modulate(s, X, C, S, t):
    rnd_bf16(s, list(range(X, X + 16)), t)
    for i in range(16):
        s('v_add_f32 v%d, 1.0, v%d' % (C + i, C + i))
    rnd_bf16(s, list(range(C, C + 16)), t)
    for i in range(16):
        s('v_mul_f32 v%d, v%d, v%d' % (X + i, X + i, C + i))
    rnd_bf16(s, list(range(X, X + 16)), t)
    for i in range(16):
        s('v_add_f32 v%d, v%d, v%d' % (X + i, X + i, S + i))


def k_ln(which):
    NWG = 512
    name = 'ln%d_kernel' % which
    k = Kernel(name, vgprs=72 if which == 1 else 136, grid=(NWG, 1, 1), block=(256, 1, 1), lds=0, sgprs=48)
    s = k.seg('main')
    s('s_cmp_ge_u32 s2, %d' % NWG)
    s('s_cbranch_scc1 %s_end' % name)
    s('s_load_dwordx2 s[4:5], s[0:1], %d' % L.KA['x'])
    s('s_load_dwordx2 s[6:7], s[0:1], %d' % L.KA['ws'])
    s('v_and_b32 v1, 63, v0')
    s('v_lshrrev_b32 v2, 6, v0')
    s('s_lshl_b32 s3, s2, 2')
    s('v_add_u32 v2, s3, v2')
    s('v_lshlrev_b32 v2, 11, v2')
    s('v_lshl_add_u32 v2, v1, 4, v2')
    s('v_lshlrev_b32 v3, 5, v1')
    s('s_waitcnt lgkmcnt(0)')
    if which == 1:
        srd(s, 8, 4, 2048 * 1024 * 2)
        srd(s, 16, 6, 2048 * 1024 * 2, L.WS['h'][0])
        so, co = 0, 4096
    else:
        srd(s, 8, 4, 2048 * 1024 * 2)
        srd(s, 16, 6, 2048 * 1024 * 2, L.WS['y'][0])
        srd(s, 24, 6, 2 * 2048 * 1024 * 2, L.WS['p'][0])
        srd(s, 28, 6, 2048 * 1024 * 2, L.WS['x1'][0])
        so, co = 3 * 4096, 4 * 4096
        s('s_mov_b32 s22, %d' % (2048 * 1024 * 2))
        s('s_mov_b32 s23, %d' % (2 * 4096))
        s('buffer_load_dwordx4 v[72:75], v2, s[24:27], 0 offen')
        s('buffer_load_dwordx4 v[76:79], v2, s[24:27], 0 offen offset:1024')
        s('buffer_load_dwordx4 v[80:83], v2, s[24:27], s22 offen')
        s('buffer_load_dwordx4 v[84:87], v2, s[24:27], s22 offen offset:1024')
    srd(s, 12, 6, 6144 * 4, L.WS['mod'][0])
    s('buffer_load_dwordx4 v[4:7], v2, s[8:11], 0 offen')
    s('buffer_load_dwordx4 v[8:11], v2, s[8:11], 0 offen offset:1024')
    s('s_mov_b32 s20, %d' % so)
    s('s_mov_b32 s21, %d' % co)
    X, C, S = 16, 32, 48
    for half in range(2):
        for j in range(2):
            s('buffer_load_dwordx4 v[%d:%d], v3, s[12:15], s21 offen offset:%d' % (C + 8 * half + 4 * j, C + 8 * half + 4 * j + 3, 2048 * half + 16 * j))
            s('buffer_load_dwordx4 v[%d:%d], v3, s[12:15], s20 offen offset:%d' % (S + 8 * half + 4 * j, S + 8 * half + 4 * j + 3, 2048 * half + 16 * j))
    unpack(s, X, 4, 8)
    if which == 2:
        G, P0, P1 = 88, 104, 120
        for half in range(2):
            for j in range(2):
                s('buffer_load_dwordx4 v[%d:%d], v3, s[12:15], s23 offen offset:%d' % (G + 8 * half + 4 * j, G + 8 * half + 4 * j + 3, 2048 * half + 16 * j))
        unpack(s, P0, 72, 8)
        unpack(s, P1, 80, 8)
        for i in range(16):
            s('v_add_f32 v%d, v%d, v%d' % (P0 + i, P0 + i, P1 + i))
        rnd_bf16(s, list(range(P0, P0 + 16)), 64)
        for i in range(16):
            s('v_mul_f32 v%d, v%d, v%d' % (P0 + i, P0 + i, G + i))
        rnd_bf16(s, list(range(P0, P0 + 16)), 64)
        for i in range(16):
            s('v_add_f32 v%d, v%d, v%d' % (X + i, X + i, P0 + i))
        for i in range(8):
            s('v_cvt_pk_bf16_f32 v%d, v%d, v%d' % (72 + i, X + 2 * i, X + 2 * i + 1))
        s('buffer_store_dwordx4 v[72:75], v2, s[28:31], 0 offen')
        s('buffer_store_dwordx4 v[76:79], v2, s[28:31], 0 offen offset:1024')
        unpack(s, X, 72, 8)
    ln_core(s, X, 64)
    modulate(s, X, C, S, 64)
    if which == 2:
        rnd_bf16(s, list(range(X, X + 16)), 64)
        ln_core(s, X, 64)
    for i in range(8):
        s('v_cvt_pk_bf16_f32 v%d, v%d, v%d' % (4 + i, X + 2 * i, X + 2 * i + 1))
    s('buffer_store_dwordx4 v[4:7], v2, s[16:19], 0 offen')
    s('buffer_store_dwordx4 v[8:11], v2, s[16:19], 0 offen offset:1024')
    s.label('%s_end' % name)
    s('s_endpgm')
    return k


if __name__ == '__main__':
    open('small.s', 'w').write(build_file([k_mod(), k_ln(1), k_ln(2)]))
```

```python
MB = 1 << 20
WS = {
    'mod': (0, (6144,), 'f32'),
    'h': (1 * MB, (2048, 1024), 'bf16'),
    'x1': (5 * MB, (2048, 1024), 'bf16'),
    'y': (9 * MB, (2048, 1024), 'bf16'),
    'o': (16 * MB, (2048, 4096), 'bf16'),
    'p': (48 * MB, (2, 2048, 1024), 'bf16'),
    'h1': (32 * MB, (2048, 3584), 'bf16'),
}
KA = dict(x=0, k=8, v=16, wq=24, wo=32, bx=40, w1=48, b1=56, w2=64, b2=72, c=80, wmod=88, out=96, dbg=104, ws=112)
```

```python
import sys
from asmlib import *
from k_small import *
from k_gemm import *
from k_attn import k_attn
hdr = ''.join(l for l in open('adaLN_cond__mha_block_cached__mixer_channel_mlp__prompt.s.ref') if l.startswith(';') and '@launch' not in l and 'Override launch' not in l and 'grid=ceil' not in l)
ks = [k_mod(), k_ln(1), k_attn(), k_oproj(), k_ln(2), k_up(), k_down()]
txt = build_file(ks, header=hdr)
open('full.s','w').write(txt)
if len(sys.argv) > 1 and sys.argv[1] == 'install':
    open('adaLN_cond__mha_block_cached__mixer_channel_mlp__prompt.s','w').write(txt)
```
